```python
import torch

def _softmax(x, axis=-1):
    return torch.softmax(x, dim=axis)
def _gelu(x):
    return torch.nn.functional.gelu(x, approximate="tanh")
def _silu(x):
    return torch.nn.functional.silu(x)
def _sigmoid(x):
    return torch.sigmoid(x)
def _layernorm(x, axis=-1, eps=1e-5):
    m = x.mean(dim=axis, keepdim=True)
    v = x.var(dim=axis, keepdim=True, unbiased=False)
    return (x - m) / torch.sqrt(v + eps)
def _scatter_add(tgt, idx, src, axis=0):
    return tgt.clone().index_add_(axis, idx, src)
def _segment_sum(src, seg, n):
    out = torch.zeros((n,) + src.shape[1:], dtype=src.dtype)
    return out.index_add_(0, seg, src)
def _pad(x, pw):
    flat = tuple(v for pair in reversed(pw) for v in pair)
    return torch.nn.functional.pad(x, flat)

kernel_name = 'sequential_preLN__sliding_local_dilated__geglu_ffn__prompt'

def setup_inputs():

    _w = (lambda a: (lambda t: t.to(torch.bfloat16) if t.is_floating_point() else t)(torch.as_tensor(a)))
    def _A_setup():
        B, S, D = 1, 2048, 512
        return {
            "x": _w((lambda *s: torch.randn(*s, dtype=torch.bfloat16) * 0.05)(B, S, D)),
            "wqkv": _w((lambda *s: torch.randn(*s, dtype=torch.bfloat16) * 0.05)(D, 3 * D)),
            "wo": _w((lambda *s: torch.randn(*s, dtype=torch.bfloat16) * 0.05)(D, D)),
        }
    _A_in = _A_setup()

    def _B_setup():
        B, S, D, F = 1, 2048, 512, 1792
        return {
            "x": _w((lambda *s: torch.randn(*s, dtype=torch.bfloat16) * 0.05)(B, S, D)),
            "w_gate": _w((lambda *s: torch.randn(*s, dtype=torch.bfloat16) * 0.05)(D, F)),
            "w_up": _w((lambda *s: torch.randn(*s, dtype=torch.bfloat16) * 0.05)(D, F)),
            "w_down": _w((lambda *s: torch.randn(*s, dtype=torch.bfloat16) * 0.05)(F, D)),
        }
    _B_in = _B_setup()

    return {
        "A_x": _A_in["x"],
        "A_wqkv": _A_in["wqkv"],
        "A_wo": _A_in["wo"],
        "B_x": _B_in["x"],
        "B_w_gate": _B_in["w_gate"],
        "B_w_up": _B_in["w_up"],
        "B_w_down": _B_in["w_down"],
    }

def reference(A_x, A_wqkv, A_wo, B_x, B_w_gate, B_w_up, B_w_down):
    def _A_ref(x, wqkv, wo):
        B, S, D = x.shape
        H = 32; Dh = D // H
        W, dil = 8, 2
        qkv = (lambda x, *d: x.permute(*d))((x @ wqkv).reshape(B, S, 3, H, Dh), 2, 0, 3, 1, 4)
        q, k, v = qkv[0], qkv[1], qkv[2]
        scale = Dh ** -0.5
        pos = torch.arange(S)
        off = torch.arange(W) * dil
        idx = pos[:, None] - off[None, :]
        mask = idx >= 0
        idx_c = torch.where(mask, idx, 0).reshape(-1)
        kg = k[:, :, idx_c, :].reshape(B, H, S, W, Dh)
        vg = v[:, :, idx_c, :].reshape(B, H, S, W, Dh)
        logits = torch.einsum("bhsd,bhswd->bhsw", q, kg) * scale
        logits = torch.where(mask[None, None, :, :], logits, -1e9)
        attn = _softmax(logits, axis=-1)
        o = torch.einsum("bhsw,bhswd->bhsd", attn, vg)
        return (lambda x, *d: x.permute(*d))(o, 0, 2, 1, 3).reshape(B, S, D) @ wo

    def _B_ref(x, w_gate, w_up, w_down):
        return (_gelu(x @ w_gate) * (x @ w_up)) @ w_down

    x = A_x
    h = x + _A_ref(_layernorm(x, axis=-1), A_wqkv, A_wo)
    h2 = h + _B_ref(_layernorm(h, axis=-1), B_w_gate, B_w_up, B_w_down)
    return h2
```

```python
import re

TRANS = ("v_exp_f32", "v_log_f32", "v_rcp_f32", "v_rsq_f32", "v_sqrt_f32", "v_sin_f32", "v_cos_f32")
_REG = re.compile(r"(?<![\w.])([vas])(?:(\d+)|\[(\d+):(\d+)\])(?![\w])")


def regs_of(op):
    out = []
    op = op.strip()
    if op.startswith("-"):
        op = op[1:]
    m = re.match(r"^\|?(?:abs\()?(.*?)\)?\|?$", op)
    core = m.group(1) if m else op
    if core in ("vcc",):
        return [("s", 106), ("s", 107)]
    if core == "exec":
        return [("s", 126), ("s", 127)]
    if core == "m0":
        return [("s", 124)]
    m = _REG.fullmatch(core)
    if not m:
        return out
    k = m.group(1)
    lo = int(m.group(2)) if m.group(2) is not None else int(m.group(3))
    hi = lo if m.group(2) is not None else int(m.group(4))
    for i in range(lo, hi + 1):
        if k == "v":
            out.append(("v", i))
        elif k == "a":
            out.append(("v", 256 + i))
        else:
            out.append(("s", i))
    return out


def split_ops(rest):
    ops = []
    depth = 0
    cur = ""
    for ch in rest:
        if ch == "[":
            depth += 1
        if ch == "]":
            depth -= 1
        if ch == "," and depth == 0:
            ops.append(cur.strip())
            cur = ""
        else:
            cur += ch
    if cur.strip():
        ops.append(cur.strip())
    mods = []
    if ops:
        parts = ops[-1].split()
        ops[-1] = parts[0]
        mods = parts[1:]
    return ops, mods


class Ins:
    __slots__ = ("text", "mn", "cls", "rd", "wr", "passes", "srcc", "srcab", "dpp", "lds", "wide")

    def __init__(self, text):
        self.text = text
        t = text.split(";")[0].strip()
        self.mn = t.split()[0] if t else ""
        rest = t[len(self.mn):].strip()
        ops, mods = split_ops(rest)
        self.rd, self.wr = [], []
        self.passes = 0
        self.srcc, self.srcab = [], []
        self.dpp = any(m.startswith(("row_", "quad_perm", "wave_", "bank_mask")) for m in mods) or self.mn.endswith("_dpp")
        self.lds = "lds" in mods
        self.wide = False
        mn = self.mn
        R = lambda i: regs_of(ops[i]) if i < len(ops) else []
        if not mn or mn.endswith(":") or mn.startswith("."):
            self.cls = "label"
        elif mn.startswith("v_mfma"):
            self.cls = "mfma"
            self.wr = R(0)
            self.srcab = R(1) + R(2)
            self.srcc = R(3)
            self.rd = self.srcab + self.srcc
            self.passes = 8 if "32x32" in mn else 4
        elif mn.startswith("v_"):
            self.cls = "trans" if mn.replace("_e32", "").replace("_e64", "") in TRANS else "valu"
            if mn.startswith("v_dot2"):
                self.cls = "dot"
            if mn.startswith("v_permlane") and "swap" in mn:
                self.wr = R(0) + R(1)
                self.rd = R(0) + R(1)
                self.cls = "permlane"
            elif mn.startswith("v_nop"):
                pass
            else:
                self.wr = R(0)
                first_src = 1
                if "_co_" in mn:
                    self.wr += R(1)
                    first_src = 2
                for i in range(first_src, len(ops)):
                    self.rd += R(i)
                if mn.startswith(("v_fmac", "v_dot2c", "v_pk_fmac", "v_writelane")):
                    self.rd += R(0)
                if mn.startswith("v_cndmask") and len(ops) == 3:
                    self.rd += regs_of("vcc")
                if mn.startswith("v_cmpx"):
                    self.wr += regs_of("exec")
                if self.dpp:
                    self.rd += R(0)
        elif mn.startswith("ds_"):
            self.cls = "ds"
            if mn.startswith(("ds_read", "ds_bpermute", "ds_permute", "ds_swizzle")):
                self.wr = R(0)
                for i in range(1, len(ops)):
                    self.rd += R(i)
            else:
                for i in range(len(ops)):
                    self.rd += R(i)
        elif mn.startswith(("buffer_", "global_")):
            self.cls = "vmem"
            if mn in ("buffer_wbl2", "buffer_inv"):
                pass
            elif "load" in mn and not self.lds and "_lds_" not in mn:
                self.wr = R(0)
                for i in range(1, len(ops)):
                    self.rd += R(i)
            else:
                for i in range(len(ops)):
                    self.rd += R(i)
                if self.lds or "_lds_" in mn:
                    self.lds = True
                    self.rd += regs_of("m0")
                if "store" in mn and ("x4" in mn or "x3" in mn):
                    self.wide = True
                if "atomic" in mn and "sc0" in mods:
                    self.wr = R(0)
        elif mn.startswith("s_"):
            self.cls = "salu"
            if mn.startswith(("s_cmp", "s_cbranch", "s_branch", "s_waitcnt", "s_barrier", "s_nop", "s_endpgm",
                              "s_setprio", "s_sleep", "s_bitcmp")):
                for i in range(len(ops)):
                    self.rd += R(i)
            else:
                self.wr = R(0)
                for i in range(1, len(ops)):
                    self.rd += R(i)
                if "saveexec" in mn:
                    self.wr += regs_of("exec")
        else:
            raise ValueError("unknown instruction: " + text)


def hazard_pass(lines):
    out = []
    pos = 0
    lastw = {}
    lastc = {}
    lastst = {}
    nins = 0
    for text in lines:
        for sub in text.split("\n"):
            if not sub.strip():
                continue
            I = Ins(sub)
            if I.cls == "label":
                out.append(sub)
                continue
            need = 0

            def req(p, d):
                nonlocal need
                need = max(need, p + d + 1)

            isvalu = I.cls in ("valu", "trans", "dot", "permlane")
            for r in I.rd:
                w = lastw.get(r)
                if not w:
                    continue
                p, c, ps, D = w
                if r[0] == "v":
                    if c == "mfma":
                        if I.cls == "mfma":
                            if r in I.srcc and r not in I.srcab:
                                if tuple(I.srcc) == D and I.passes == ps:
                                    pass
                                else:
                                    req(p, ps + 2)
                            else:
                                req(p, ps + 4)
                        else:
                            req(p, ps + 4)
                    elif c in ("valu", "trans", "dot", "permlane"):
                        if I.cls == "mfma":
                            req(p, 3 if c == "dot" else 2)
                        if c == "trans" and I.cls != "trans" and (isvalu):
                            req(p, 1)
                        if c == "trans" and I.cls in ("ds", "vmem"):
                            req(p, 1)
                        if c == "dot" and not (I.cls == "dot"):
                            req(p, 3)
                        if I.cls == "permlane" or I.dpp:
                            req(p, 2)
                        if I.mn.startswith(("v_readlane", "v_readfirstlane")):
                            req(p, 1)
                else:
                    if c in ("valu", "trans", "dot", "permlane"):
                        if I.cls == "vmem":
                            req(p, 5)
                        elif isvalu or I.cls == "mfma":
                            req(p, 4 if I.mn.startswith(("v_readlane", "v_writelane")) else 2)
                        elif I.cls == "salu":
                            req(p, 1)
                    elif c == "salu":
                        if r == ("s", 124) and I.cls == "vmem" and I.lds:
                            req(p, 1)
            for r in I.wr:
                if r[0] == "v":
                    w = lastw.get(r)
                    if w and w[1] == "mfma" and I.cls != "mfma":
                        req(w[0], w[2] + 4)
                    if w and w[1] == "mfma" and I.cls == "mfma" and not (tuple(I.srcc) == w[3]):
                        req(w[0], w[2] + 2)
                    if w and w[1] == "dot" and I.cls != "dot":
                        req(w[0], 3)
                    c = lastc.get(r)
                    if c and isvalu:
                        req(c[0], c[1] - 1)
                    s = lastst.get(r)
                    if s is not None:
                        req(s, 2)
            if need > pos:
                n = need - pos
                while n > 0:
                    k = min(n, 16)
                    out.append(f"s_nop {k-1}")
                    pos += k
                    n -= k
            out.append(sub)
            nins += 1
            here = pos
            if I.mn == "s_nop":
                pos += int(sub.split()[1], 0) + 1
            else:
                pos += 1
            for r in I.wr:
                lastw[r] = (here, I.cls, I.passes, tuple(I.wr))
            if I.cls == "mfma":
                for r in I.srcc:
                    lastc[r] = (here, I.passes)
            if I.wide:
                ops, _ = split_ops(sub.split(";")[0].strip()[len(I.mn):].strip())
                d = ops[0] if I.mn.startswith("buffer_") else ops[1]
                for r in regs_of(d):
                    lastst[r] = here
    return out


class Asm:
    def __init__(self):
        self.lines = []
        self.vm = []
        self.lg = []
        self.uid = 0

    def __call__(self, s):
        for l in s.split("\n"):
            l = l.strip()
            if l:
                self.lines.append(l)

    def label(self, base):
        self.uid += 1
        return f"L_{base}_{self.uid}"

    def vmem(self, s, tag=None):
        self(s)
        self.vm.append(tag)

    def wait_vm(self, tag):
        tags = tag if isinstance(tag, (list, set)) else [tag]
        last = -1
        for i, t in enumerate(self.vm):
            if t in tags:
                last = i
        if last < 0:
            return
        n = len(self.vm) - 1 - last
        self(f"s_waitcnt vmcnt({min(n, 63)})")
        self.vm = self.vm[last + 1:] if n <= 63 else self.vm[len(self.vm) - 63:]

    def wait_vm_all(self):
        self("s_waitcnt vmcnt(0)")
        self.vm = []

    def ds(self, s, tag=None):
        self(s)
        self.lg.append(tag)

    def wait_lg(self, tag):
        tags = tag if isinstance(tag, (list, set)) else [tag]
        last = -1
        for i, t in enumerate(self.lg):
            if t in tags:
                last = i
        if last < 0:
            return
        n = len(self.lg) - 1 - last
        self(f"s_waitcnt lgkmcnt({min(n, 15)})")
        self.lg = self.lg[last + 1:] if n <= 15 else self.lg[len(self.lg) - 15:]

    def wait_lg_all(self):
        self("s_waitcnt lgkmcnt(0)")
        self.lg = []

    def text(self):
        return "\n".join(hazard_pass(self.lines)) + "\n"


def vr(lo, n=1):
    k = "v"
    if lo >= 256:
        k = "a"
        lo -= 256
    else:
        assert lo + n <= 256, (lo, n)
    return f"{k}{lo}" if n == 1 else f"{k}[{lo}:{lo+n-1}]"


def sr(lo, n=1):
    return f"s{lo}" if n == 1 else f"s[{lo}:{lo+n-1}]"


def kernel_desc(name, vgpr=512, sgpr=102, accum=256):
    return f""".amdhsa_kernel {name}
  .amdhsa_next_free_vgpr {vgpr}
  .amdhsa_next_free_sgpr {sgpr}
  .amdhsa_accum_offset {accum}
  .amdhsa_group_segment_fixed_size 0
  .amdhsa_kernarg_size 80
  .amdhsa_user_sgpr_count 2
  .amdhsa_user_sgpr_kernarg_segment_ptr 1
  .amdhsa_system_sgpr_workgroup_id_x 1
.end_amdhsa_kernel
"""
```

```python
import sys
from asmlib import *

MB = 1 << 20
OFF_O = 0
OFF_H = 2 * MB
OFF_ACT = 4 * MB
OFF_ST = 12 * MB
OFF_CS = 13 * MB
WS_USED = 16 * MB

P_X, P_QKV, P_WO, P_BX, P_WG, P_WU, P_WD, P_OUT, P_DBG, P_WS = 16, 18, 20, 22, 24, 26, 28, 30, 32, 34
S_WAVE, S_XCD, S_I = 3, 4, 5
V_LANE = 1


def srd(a, dst, ptr, nbytes):
    a(f"s_mov_b32 s{dst}, s{ptr}")
    a(f"s_mov_b32 s{dst+1}, s{ptr+1}")
    a(f"s_mov_b32 s{dst+2}, {nbytes}")
    a(f"s_mov_b32 s{dst+3}, 0x00020000")


def prologue(a, name):
    a(f".globl {name}\n.p2align 8\n.type {name},@function\n{name}:")
    a(f"s_cmp_ge_u32 s2, 256\ns_cbranch_scc1 L_end_{name}")
    a("s_load_dwordx16 s[16:31], s[0:1], 0")
    a("s_load_dwordx4 s[32:35], s[0:1], 64")
    a(f"v_and_b32 v{V_LANE}, 63, v0")
    a("v_lshrrev_b32 v2, 6, v0")
    a(f"v_readfirstlane_b32 s{S_WAVE}, v2")
    a(f"s_and_b32 s{S_XCD}, s2, 7")
    a(f"s_lshr_b32 s{S_I}, s2, 3")


STAMP = False
def stamp(a, idx):
    if not STAMP:
        return
    a("s_memtime s[68:69]")
    a("s_waitcnt lgkmcnt(0)")
    a.lg = []
    a(f"s_mov_b32 s{70+idx}, s68")

def stamp_flush(a, n, sws, kidx):
    if not STAMP:
        return
    stamp(a, n)
    for i in range(n + 1):
        a(f"v_mov_b32 v{200+i}, s{70+i}")
    a("v_lshlrev_b32 v199, 7, v0")
    a(f"v_cmp_eq_u32 vcc, 0, v{V_LANE}")
    a("v_mov_b32 v198, 0x7fffffff")
    a("v_cndmask_b32 v199, v198, v199, vcc")
    a("v_lshrrev_b32 v199, 6, v199")
    a("s_lshl_b32 s56, s2, 9")
    a(f"s_add_u32 s56, s56, {14*MB + kidx*131072}")
    for i in range(0, n + 1, 4):
        a(f"buffer_store_dwordx4 v[{200+i}:{203+i}], v199, s[{sws}:{sws+3}], s56 offen offset:{i*4}")

def epilogue(a, name):
    a(f"L_end_{name}:")
    a("s_endpgm")


def mfma_pipe(a, items, bufs, depth, mf="v_mfma_f32_32x32x16_bf16", filler=None):
    n = len(items)
    nb = len(bufs)
    assert depth < nb

    def issue(i):
        it = items[i]
        if it.get("pre"):
            it["pre"]()
        b = bufs[i % nb]
        a.ds(f"ds_read_b64_tr_b16 {vr(b,2)}, v{it['addr']} offset:{it['o0']}", ("wf", i))
        a.ds(f"ds_read_b64_tr_b16 {vr(b+2,2)}, v{it['addr']} offset:{it['o1']}", ("wf", i))

    for i in range(min(depth, n)):
        issue(i)
    for i in range(n):
        if i + depth < n:
            issue(i + depth)
        it = items[i]
        if it.get("premf"):
            it["premf"]()
        a.wait_lg(("wf", i))
        b = bufs[i % nb]
        for (acc, accn, act, swap) in it["mf"]:
            c = it.get("czero") and "0" or vr(acc, accn)
            if swap:
                a(f"{mf} {vr(acc,accn)}, {vr(act,4)}, {vr(b,4)}, {c}")
            else:
                a(f"{mf} {vr(acc,accn)}, {vr(b,4)}, {vr(act,4)}, {c}")
            if filler:
                filler()
        if it.get("post"):
            it["post"]()


def xlane32_sum(a, s, t):
    a(f"v_mov_b32 v{t}, v{s}")
    a(f"v_permlane32_swap_b32 v{s}, v{t}")
    a(f"v_add_f32 v{s}, v{s}, v{t}")


def tr_addr(a, dst, natural, tmp):
    a(f"v_bfe_u32 v{tmp}, v{V_LANE}, 2, 2")
    a(f"v_lshlrev_b32 v{dst}, 7, v{tmp}")
    a(f"v_lshrrev_b32 v{tmp}, 1, v{tmp}")
    a(f"v_lshl_add_u32 v{dst}, v{tmp}, 6, v{dst}")
    a(f"v_bfe_u32 v{tmp}, v{V_LANE}, 4, 1")
    a(f"v_lshl_add_u32 v{dst}, v{tmp}, 5, v{dst}")
    a(f"v_and_b32 v{tmp}, 3, v{V_LANE}")
    a(f"v_lshl_add_u32 v{dst}, v{tmp}, 3, v{dst}")
    a(f"v_lshrrev_b32 v{tmp}, 5, v{V_LANE}")
    a(f"v_lshl_add_u32 v{dst}, v{tmp}, {10 if natural else 9}, v{dst}")


def dma128_voff(a, dst, pitch, tmp, tmp2):
    a(f"v_lshrrev_b32 v{tmp}, 3, v{V_LANE}")
    a(f"v_mul_u32_u24 v{dst}, {pitch}, v{tmp}")
    a(f"v_bfe_u32 v{tmp}, v{V_LANE}, 4, 1")
    a(f"v_lshlrev_b32 v{tmp}, 2, v{tmp}")
    a(f"v_and_b32 v{tmp2}, 7, v{V_LANE}")
    a(f"v_xor_b32 v{tmp}, v{tmp}, v{tmp2}")
    a(f"v_lshl_add_u32 v{dst}, v{tmp}, 4, v{dst}")


def gen_k2(a):
    name = "k2_kernel"
    prologue(a, name)
    S_RB, S_CB, S_M, S_KH, S_T = 6, 7, 8, 9, 10
    SX, SW, SWS, SG, SU = 36, 40, 44, 48, 52
    a(f"s_lshr_b32 s{S_RB}, s{S_I}, 3")
    a(f"s_lshl_b32 s56, s{S_XCD}, 2")
    a(f"s_add_u32 s{S_RB}, s{S_RB}, s56")
    a(f"s_and_b32 s{S_CB}, s{S_I}, 7")
    a(f"s_and_b32 s{S_M}, s{S_WAVE}, 1")
    a(f"s_lshr_b32 s{S_KH}, s{S_WAVE}, 1")
    a(f"s_lshl_b32 s{S_T}, s{S_RB}, 1")
    a(f"s_add_u32 s{S_T}, s{S_T}, s{S_M}")
    V_L16, V_DMA, V_A0, V_A1, V_XD, V_XR, V_T0, V_T1 = 2, 3, 4, 5, 6, 7, 8, 9
    AF, ACC, WB = 64, 128, 160
    LDS_X, LDS_RED, LDS_CS = 65536, 73728, 90112
    a(f"v_lshlrev_b32 v{V_L16}, 4, v{V_LANE}")
    dma128_voff(a, V_DMA, 1024, V_T0, V_T1)
    tr_addr(a, V_A0, True, V_T0)
    a(f"s_lshl_b32 s56, s{S_KH}, 15")
    a(f"s_lshl_b32 s57, s{S_KH}, 6")
    a(f"v_add_u32 v{V_A0}, s56, v{V_A0}")
    a(f"v_xor_b32 v{V_A0}, s57, v{V_A0}")
    a(f"v_xor_b32 v{V_A1}, 64, v{V_A0}")
    a(f"v_lshrrev_b32 v{V_T0}, 3, v{V_LANE}")
    a(f"v_and_b32 v{V_T1}, 7, v{V_LANE}")
    a(f"v_xor_b32 v{V_T1}, v{V_T1}, v{V_T0}")
    a(f"v_lshlrev_b32 v{V_XD}, 10, v{V_T0}")
    a(f"v_lshl_add_u32 v{V_XD}, v{V_T1}, 4, v{V_XD}")
    a("s_waitcnt lgkmcnt(0)")
    srd(a, SX, P_X, 2 * MB)
    srd(a, SW, P_WO, 512 * 1024)
    srd(a, SWS, P_WS, WS_USED)
    srd(a, SG, P_WG, 512 * 3584)
    srd(a, SU, P_WU, 512 * 3584)
    S_AO, S_BO, S_M0 = 60, 61, 62
    a(f"s_lshl_b32 s56, s{S_T}, 5")
    a(f"s_lshl_b32 s57, s{S_KH}, 4")
    a(f"s_add_u32 s56, s56, s57")
    a(f"s_lshl_b32 s{S_AO}, s56, 10")
    if OFF_O:
        a(f"s_add_u32 s{S_AO}, s{S_AO}, {OFF_O}")
    a(f"s_lshl_b32 s56, s{S_KH}, 8")
    a(f"s_lshl_b32 s57, s{S_M}, 3")
    a(f"s_add_u32 s56, s56, s57")
    a(f"s_lshl_b32 s{S_M0}, s56, 7")
    a(f"s_lshl_b32 s{S_BO}, s56, 10")
    a(f"s_lshl_b32 s57, s{S_CB}, 7")
    a(f"s_add_u32 s{S_BO}, s{S_BO}, s57")
    for c in range(4):
        for i in range(4):
            a(f"s_mov_b32 m0, s{S_M0}")
            a(f"s_add_u32 s{S_M0}, s{S_M0}, 2048")
            a.vmem(f"buffer_load_dwordx4 v{V_DMA}, s[{SW}:{SW+3}], s{S_BO} offen lds", ("c", c))
            a(f"s_add_u32 s{S_BO}, s{S_BO}, 16384")
        for i in range(4):
            a.vmem(f"buffer_load_dwordx4 {vr(AF+(4*c+i)*4,4)}, v{V_L16}, s[{SWS}:{SWS+3}], s{S_AO} offen offset:{i*1024}", ("c", c))
        a(f"s_add_u32 s{S_AO}, s{S_AO}, 4096")
    a(f"s_lshl_b32 s56, s{S_RB}, 6")
    a(f"s_lshl_b32 s57, s{S_WAVE}, 4")
    a(f"s_add_u32 s56, s56, s57")
    a(f"s_lshl_b32 s56, s56, 10")
    a(f"s_lshl_b32 s58, s{S_CB}, 7")
    a(f"s_add_u32 s56, s56, s58")
    a(f"s_lshl_b32 s57, s{S_WAVE}, 11")
    a(f"s_add_u32 m0, s57, {LDS_X}")
    a("s_nop 0")
    a.vmem(f"buffer_load_dwordx4 v{V_XD}, s[{SX}:{SX+3}], s56 offen lds", "x")
    a(f"s_add_u32 m0, s57, {LDS_X+1024}")
    a(f"s_add_u32 s56, s56, 8192")
    a.vmem(f"buffer_load_dwordx4 v{V_XD}, s[{SX}:{SX+3}], s56 offen lds", "x")
    CSR = 176
    V_CO = 10
    a(f"v_lshrrev_b32 v{V_T0}, 4, v{V_LANE}")
    a(f"v_mul_u32_u24 v{V_CO}, 3584, v{V_T0}")
    a(f"v_and_b32 v{V_T1}, 15, v{V_LANE}")
    a(f"v_lshl_add_u32 v{V_CO}, v{V_T1}, 4, v{V_CO}")
    a(f"v_cmp_gt_u32 vcc, 14, v{V_T1}")
    a(f"v_mov_b32 v{V_T0}, 0x7fffffff")
    a(f"v_cndmask_b32 v{V_CO}, v{V_T0}, v{V_CO}, vcc")
    a("s_lshr_b32 s56, s2, 4")
    a("s_lshl_b32 s56, s56, 5")
    a(f"s_lshl_b32 s57, s{S_WAVE}, 3")
    a("s_add_u32 s56, s56, s57")
    a("s_mul_i32 s56, s56, 3584")
    a("s_and_b32 s57, s2, 15")
    a("s_mul_i32 s57, s57, 224")
    a("s_add_u32 s56, s56, s57")
    a(f"s_add_u32 s57, s56, {4*3584}")
    a.vmem(f"buffer_load_dwordx4 {vr(CSR,4)}, v{V_CO}, s[{SG}:{SG+3}], s56 offen", "cs")
    a.vmem(f"buffer_load_dwordx4 {vr(CSR+4,4)}, v{V_CO}, s[{SG}:{SG+3}], s57 offen", "cs")
    a.vmem(f"buffer_load_dwordx4 {vr(CSR+8,4)}, v{V_CO}, s[{SU}:{SU+3}], s56 offen", "cs")
    a.vmem(f"buffer_load_dwordx4 {vr(CSR+12,4)}, v{V_CO}, s[{SU}:{SU+3}], s57 offen", "cs")

    items = []
    for s in range(16):
        for nt in range(2):
            it = dict(addr=(V_A0 if nt == 0 else V_A1), o0=2048 * s, o1=2048 * s + 512,
                      mf=[(ACC + 16 * nt, 16, AF + 4 * s, False)], czero=(s == 0))
            if s % 4 == 0 and nt == 0:
                def pre(c=s // 4):
                    a.wait_vm(("c", c))
                    a("s_barrier")
                it["pre"] = pre
            items.append(it)
    mfma_pipe(a, items, [WB, WB + 4, WB + 8, WB + 12], 3)
    a(f"s_lshl_b32 s56, s{S_WAVE}, 12")
    a(f"s_add_u32 s56, s56, {LDS_RED}")
    a(f"v_add_u32 v{V_T0}, s56, v{V_L16}")
    a(f"v_xor_b32 v{V_T1}, 8192, v{V_T0}")
    assert LDS_RED % 16384 == 8192 or LDS_RED % 16384 == 0
    if LDS_RED % 16384 == 8192:
        a(f"s_xor_b32 s57, s{S_WAVE}, 2")
        a(f"s_lshl_b32 s57, s57, 12")
        a(f"s_add_u32 s57, s57, {LDS_RED}")
        a(f"v_add_u32 v{V_T1}, s57, v{V_L16}")
    for q in range(4):
        a.ds(f"ds_write_b128 v{V_T0}, {vr(ACC+16+4*q,4)} offset:{q*1024}")
    a.wait_vm("x")
    a.wait_lg_all()
    a("s_barrier")
    for q in range(4):
        a.ds(f"ds_read_b128 {vr(ACC+16+4*q,4)}, v{V_T1} offset:{q*1024}")
    a(f"v_and_b32 v{V_T0}, 31, v{V_LANE}")
    a(f"s_lshl_b32 s56, s{S_M}, 5")
    a(f"v_add_u32 v{V_T0}, s56, v{V_T0}")
    a(f"v_lshlrev_b32 v{V_XR}, 7, v{V_T0}")
    a(f"v_and_b32 v{V_T0}, 7, v{V_T0}")
    a(f"s_lshl_b32 s56, s{S_KH}, 2")
    a(f"v_xor_b32 v{V_T0}, s56, v{V_T0}")
    a(f"v_lshl_add_u32 v{V_XR}, v{V_T0}, 4, v{V_XR}")
    a(f"v_lshrrev_b32 v{V_T0}, 5, v{V_LANE}")
    a(f"v_lshl_add_u32 v{V_XR}, v{V_T0}, 3, v{V_XR}")
    a(f"v_add_u32 v{V_XR}, {LDS_X}, v{V_XR}")
    XR = 16
    for q in range(4):
        a(f"v_xor_b32 v{V_T0}, {q*16}, v{V_XR}")
        a.ds(f"ds_read_b64 {vr(XR+2*q,2)}, v{V_T0}")
    a.wait_lg_all()
    for r in range(16):
        a(f"v_add_f32 v{ACC+r}, v{ACC+r}, v{ACC+16+r}")
    for q in range(8):
        a(f"v_lshlrev_b32 v{V_T0}, 16, v{XR+q}")
        a(f"v_and_b32 v{V_T1}, 0xffff0000, v{XR+q}")
        a(f"v_add_f32 v{ACC+2*q}, v{ACC+2*q}, v{V_T0}")
        a(f"v_add_f32 v{ACC+2*q+1}, v{ACC+2*q+1}, v{V_T1}")
    HP = 24
    for q in range(8):
        a(f"v_cvt_pk_bf16_f32 v{HP+q}, v{ACC+2*q}, v{ACC+2*q+1}")
    a(f"s_lshl_b32 s56, s{S_T}, 5")
    a(f"s_lshl_b32 s57, s{S_CB}, 2")
    a("s_add_u32 s56, s56, s57")
    a(f"s_lshl_b32 s57, s{S_KH}, 1")
    a("s_add_u32 s56, s56, s57")
    a("s_lshl_b32 s56, s56, 10")
    a(f"s_add_u32 s56, s56, {OFF_H}")
    a.vmem(f"buffer_store_dwordx4 {vr(HP,4)}, v{V_L16}, s[{SWS}:{SWS+3}], s56 offen")
    a.vmem(f"buffer_store_dwordx4 {vr(HP+4,4)}, v{V_L16}, s[{SWS}:{SWS+3}], s56 offen offset:1024")
    for q in range(8):
        a(f"v_lshlrev_b32 v{ACC+2*q}, 16, v{HP+q}")
        a(f"v_and_b32 v{ACC+2*q+1}, 0xffff0000, v{HP+q}")
    SM, M2 = 32, 33
    a(f"v_add_f32 v{SM}, v{ACC}, v{ACC+1}")
    for r in range(2, 16):
        a(f"v_add_f32 v{SM}, v{SM}, v{ACC+r}")
    xlane32_sum(a, SM, V_T0)
    a(f"v_mul_f32 v{SM}, {1.0/32}, v{SM}")
    a(f"v_mov_b32 v{M2}, 0")
    for r in range(16):
        a(f"v_sub_f32 v{V_T0}, v{ACC+r}, v{SM}")
        a(f"v_fmac_f32 v{M2}, v{V_T0}, v{V_T0}")
    xlane32_sum(a, M2, V_T0)
    a(f"s_lshl_b32 s56, s{S_CB}, 1")
    a(f"s_add_u32 s56, s56, s{S_KH}")
    a("s_lshl_b32 s56, s56, 14")
    a(f"s_lshl_b32 s57, s{S_T}, 8")
    a("s_add_u32 s56, s56, s57")
    a(f"s_add_u32 s56, s56, {OFF_ST}")
    a(f"v_lshlrev_b32 v{V_T0}, 3, v{V_LANE}")
    a(f"v_cmp_gt_u32 vcc, 32, v{V_LANE}")
    a(f"v_mov_b32 v{V_T1}, 0x7fffffff")
    a(f"v_cndmask_b32 v{V_T0}, v{V_T1}, v{V_T0}, vcc")
    a.vmem(f"buffer_store_dwordx2 {vr(SM,2)}, v{V_T0}, s[{SWS}:{SWS+3}], s56 offen")
    a.wait_vm("cs")
    CA = 40
    for mtx in range(2):
        for d in range(4):
            p0, p1 = CSR + 8 * mtx + d, CSR + 8 * mtx + 4 + d
            a(f"v_lshlrev_b32 v{V_T0}, 16, v{p0}")
            a(f"v_lshlrev_b32 v{V_T1}, 16, v{p1}")
            a(f"v_add_f32 v{CA+8*mtx+2*d}, v{V_T0}, v{V_T1}")
            a(f"v_and_b32 v{V_T0}, 0xffff0000, v{p0}")
            a(f"v_and_b32 v{V_T1}, 0xffff0000, v{p1}")
            a(f"v_add_f32 v{CA+8*mtx+2*d+1}, v{V_T0}, v{V_T1}")
    a(f"v_lshrrev_b32 v{V_T0}, 4, v{V_LANE}")
    a(f"s_lshl_b32 s56, s{S_WAVE}, 2")
    a(f"v_add_u32 v{V_T0}, s56, v{V_T0}")
    a(f"v_lshlrev_b32 v{V_T0}, 10, v{V_T0}")
    a(f"v_bfe_u32 v{V_T1}, v{V_LANE}, 1, 3")
    a(f"v_lshl_add_u32 v{V_T0}, v{V_T1}, 7, v{V_T0}")
    a(f"v_and_b32 v{V_T1}, 1, v{V_LANE}")
    a(f"v_lshl_add_u32 v{V_T0}, v{V_T1}, 5, v{V_T0}")
    a(f"v_add_u32 v{V_T0}, {LDS_CS}, v{V_T0}")
    a.ds(f"ds_write_b128 v{V_T0}, {vr(CA,4)}")
    a.ds(f"ds_write_b128 v{V_T0}, {vr(CA+4,4)} offset:16")
    a.ds(f"ds_write_b128 v{V_T0}, {vr(CA+8,4)} offset:64")
    a.ds(f"ds_write_b128 v{V_T0}, {vr(CA+12,4)} offset:80")
    a.wait_lg_all()
    a("s_barrier")
    a(f"v_lshlrev_b32 v{V_T0}, 2, v0")
    a(f"v_add_u32 v{V_T1}, {LDS_CS}, v{V_T0}")
    for q in range(16):
        a.ds(f"ds_read_b32 v{CA+q}, v{V_T1} offset:{q*1024}")
    a.wait_lg_all()
    for q in range(1, 16):
        a(f"v_add_f32 v{CA}, v{CA}, v{CA+q}")
    a("v_cmp_gt_u32 vcc, 224, v0")
    a(f"v_mov_b32 v{V_T1}, 0x7fffffff")
    a(f"v_cndmask_b32 v{V_T0}, v{V_T1}, v{V_T0}, vcc")
    a("s_mul_i32 s56, s2, 896")
    a(f"s_add_u32 s56, s56, {OFF_CS}")
    a.vmem(f"buffer_store_dword v{CA}, v{V_T0}, s[{SWS}:{SWS+3}], s56 offen")
    epilogue(a, name)
    return name


def gen_k4(a):
    name = "k4_kernel"
    prologue(a, name)
    S_RB, S_CB, S_M, S_KH, S_T = 6, 7, 8, 9, 10
    SW, SWS, SO = 40, 44, 48
    a(f"s_lshr_b32 s{S_RB}, s{S_I}, 3")
    a(f"s_lshl_b32 s56, s{S_XCD}, 2")
    a(f"s_add_u32 s{S_RB}, s{S_RB}, s56")
    a(f"s_and_b32 s{S_CB}, s{S_I}, 7")
    a(f"s_and_b32 s{S_M}, s{S_WAVE}, 1")
    a(f"s_lshr_b32 s{S_KH}, s{S_WAVE}, 1")
    a(f"s_lshl_b32 s{S_T}, s{S_RB}, 1")
    a(f"s_add_u32 s{S_T}, s{S_T}, s{S_M}")
    V_L16, V_DMA, V_T0, V_T1 = 2, 3, 8, 9
    V_A = [4, 5, 6, 7, 10, 11]
    ACC, WB, HF = 32, 64, 80
    AF = 256
    NSLOT, NCH = 9, 14
    SLOT = 16384
    LDS_RED = NSLOT * SLOT
    a(f"v_lshlrev_b32 v{V_L16}, 4, v{V_LANE}")
    dma128_voff(a, V_DMA, 1024, V_T0, V_T1)
    tr_addr(a, V_A[0], False, V_T0)
    a(f"s_lshl_b32 s56, s{S_KH}, 13")
    a(f"s_lshl_b32 s57, s{S_KH}, 6")
    a(f"v_add_u32 v{V_A[0]}, s56, v{V_A[0]}")
    a(f"v_xor_b32 v{V_A[0]}, s57, v{V_A[0]}")
    a(f"v_xor_b32 v{V_A[1]}, 64, v{V_A[0]}")
    for wdw in (1, 2):
        a(f"v_add_u32 v{V_A[2*wdw]}, {65536*wdw}, v{V_A[0]}")
        a(f"v_add_u32 v{V_A[2*wdw+1]}, {65536*wdw}, v{V_A[1]}")
    a("s_waitcnt lgkmcnt(0)")
    srd(a, SW, P_WD, 1792 * 1024)
    srd(a, SWS, P_WS, WS_USED)
    srd(a, SO, P_OUT, 2 * MB)
    S_AO, S_BO, S_M0 = 60, 61, 62
    a(f"s_mul_i32 s56, s{S_T}, 112")
    a(f"s_mul_i32 s57, s{S_KH}, 56")
    a("s_add_u32 s56, s56, s57")
    a(f"s_lshl_b32 s{S_AO}, s56, 10")
    a(f"s_add_u32 s{S_AO}, s{S_AO}, {OFF_ACT}")
    a(f"s_mul_i32 s56, s{S_KH}, 896")
    a(f"s_lshl_b32 s57, s{S_M}, 5")
    a("s_add_u32 s56, s56, s57")
    a(f"s_lshl_b32 s{S_BO}, s56, 10")
    a(f"s_lshl_b32 s57, s{S_CB}, 7")
    a(f"s_add_u32 s{S_BO}, s{S_BO}, s57")
    a(f"s_lshl_b32 s{S_M0}, s{S_KH}, 13")
    a(f"s_lshl_b32 s57, s{S_M}, 12")
    a(f"s_add_u32 s{S_M0}, s{S_M0}, s57")

    def dma_chunk(c):
        slot = c % NSLOT
        for i in range(4):
            a(f"s_add_u32 m0, s{S_M0}, {slot*SLOT + i*1024}")
            a(f"s_add_u32 s56, s{S_BO}, {(64*c + 8*i)*1024}")
            a.vmem(f"buffer_load_dwordx4 v{V_DMA}, s[{SW}:{SW+3}], s56 offen lds", ("c", c))

    def a_chunk(c):
        a(f"s_add_u32 s57, s{S_AO}, {c*4096}")
        for i in range(4):
            a.vmem(f"buffer_load_dwordx4 {vr(AF+(4*c+i)*4,4)}, v{V_L16}, s[{SWS}:{SWS+3}], s57 offen offset:{i*1024}", ("c", c))

    PRE = 7
    stamp(a, 0)
    for c in range(PRE):
        dma_chunk(c)
        a_chunk(c)
    nxt = [PRE]

    items = []
    for c in range(NCH):
        slot = c % NSLOT
        for s4 in range(4):
            for nt in range(2):
                off = slot * SLOT + s4 * 2048
                wdw = off // 65536
                off -= wdw * 65536
                it = dict(addr=V_A[2 * wdw + nt], o0=off, o1=off + 1024,
                          mf=[(ACC + 16 * nt, 16, AF + 4 * (4 * c + s4), False)], czero=(c == 0 and s4 == 0))
                if s4 == 0 and nt == 0:
                    def pre(c=c):
                        a.wait_vm(("c", c))
                        a("s_barrier")
                        stamp(a, 1 + c)
                        while nxt[0] < NCH and nxt[0] <= c - 2 + NSLOT and nxt[0] <= c + PRE:
                            dma_chunk(nxt[0])
                            a_chunk(nxt[0])
                            nxt[0] += 1
                        if c == NCH - 1:
                            a(f"s_lshl_b32 s56, s{S_T}, 5")
                            a(f"s_lshl_b32 s57, s{S_CB}, 2")
                            a("s_add_u32 s56, s56, s57")
                            a(f"s_lshl_b32 s57, s{S_KH}, 1")
                            a("s_add_u32 s56, s56, s57")
                            a("s_lshl_b32 s56, s56, 10")
                            a(f"s_add_u32 s56, s56, {OFF_H}")
                            a.vmem(f"buffer_load_dwordx4 {vr(HF,4)}, v{V_L16}, s[{SWS}:{SWS+3}], s56 offen", "h")
                            a.vmem(f"buffer_load_dwordx4 {vr(HF+4,4)}, v{V_L16}, s[{SWS}:{SWS+3}], s56 offen offset:1024", "h")
                    it["pre"] = pre
                items.append(it)
    mfma_pipe(a, items, [WB, WB + 4, WB + 8, WB + 12], 3)
    assert nxt[0] == NCH
    stamp(a, 15)
    a(f"s_lshl_b32 s56, s{S_WAVE}, 12")
    a(f"s_add_u32 s56, s56, {LDS_RED}")
    a(f"v_add_u32 v{V_T0}, s56, v{V_L16}")
    a(f"s_xor_b32 s57, s{S_WAVE}, 2")
    a(f"s_lshl_b32 s57, s57, 12")
    a(f"s_add_u32 s57, s57, {LDS_RED}")
    a(f"v_add_u32 v{V_T1}, s57, v{V_L16}")
    for q in range(4):
        a.ds(f"ds_write_b128 v{V_T0}, {vr(ACC+16+4*q,4)} offset:{q*1024}")
    a.wait_lg_all()
    a("s_barrier")
    for q in range(4):
        a.ds(f"ds_read_b128 {vr(ACC+16+4*q,4)}, v{V_T1} offset:{q*1024}")
    a.wait_lg_all()
    a.wait_vm("h")
    for r in range(16):
        a(f"v_add_f32 v{ACC+r}, v{ACC+r}, v{ACC+16+r}")
    for q in range(8):
        a(f"v_lshlrev_b32 v{V_T0}, 16, v{HF+q}")
        a(f"v_and_b32 v{V_T1}, 0xffff0000, v{HF+q}")
        a(f"v_add_f32 v{ACC+2*q}, v{ACC+2*q}, v{V_T0}")
        a(f"v_add_f32 v{ACC+2*q+1}, v{ACC+2*q+1}, v{V_T1}")
    OP = 16
    for q in range(8):
        a(f"v_cvt_pk_bf16_f32 v{OP+q}, v{ACC+2*q}, v{ACC+2*q+1}")
    a(f"v_and_b32 v{V_T0}, 31, v{V_LANE}")
    a(f"v_lshlrev_b32 v{V_T1}, 6, v{V_T0}")
    a(f"v_bfe_u32 v{V_T0}, v{V_LANE}, 1, 2")
    a(f"v_lshl_add_u32 v{V_T1}, v{V_T0}, 4, v{V_T1}")
    a(f"v_lshrrev_b32 v{V_T0}, 5, v{V_LANE}")
    a(f"v_lshl_add_u32 v{V_T1}, v{V_T0}, 3, v{V_T1}")
    a(f"s_lshl_b32 s56, s{S_WAVE}, 11")
    a(f"v_add_u32 v{V_T1}, s56, v{V_T1}")
    for q in range(4):
        a(f"v_xor_b32 v{V_T0}, {q*16}, v{V_T1}")
        a.ds(f"ds_write_b64 v{V_T0}, {vr(OP+2*q,2)}")
    a(f"v_lshrrev_b32 v{V_T0}, 2, v{V_LANE}")
    a(f"v_lshlrev_b32 v{V_T1}, 6, v{V_T0}")
    a(f"v_bfe_u32 v12, v{V_LANE}, 3, 2")
    a(f"v_and_b32 v13, 3, v{V_LANE}")
    a("v_xor_b32 v12, v12, v13")
    a(f"v_lshl_add_u32 v{V_T1}, v12, 4, v{V_T1}")
    a(f"v_add_u32 v{V_T1}, s56, v{V_T1}")
    a.wait_lg_all()
    a.ds(f"ds_read_b128 {vr(OP,4)}, v{V_T1}")
    a.ds(f"ds_read_b128 {vr(OP+4,4)}, v{V_T1} offset:1024")
    a(f"v_lshlrev_b32 v{V_T0}, 10, v{V_T0}")
    a(f"v_lshl_add_u32 v{V_T0}, v13, 4, v{V_T0}")
    a(f"s_lshl_b32 s56, s{S_T}, 15")
    a(f"s_lshl_b32 s57, s{S_CB}, 7")
    a("s_add_u32 s56, s56, s57")
    a(f"s_lshl_b32 s57, s{S_KH}, 6")
    a("s_add_u32 s56, s56, s57")
    a("s_add_u32 s57, s56, 16384")
    a.wait_lg_all()
    a.vmem(f"buffer_store_dwordx4 {vr(OP,4)}, v{V_T0}, s[{SO}:{SO+3}], s56 offen")
    a.vmem(f"buffer_store_dwordx4 {vr(OP+4,4)}, v{V_T0}, s[{SO}:{SO+3}], s57 offen")
    stamp_flush(a, 16, SWS, 3)
    epilogue(a, name)
    return name


def build(which, path):
    gens = {"k2": gen_k2, "k4": gen_k4}
    try:
        from gen_k13 import gen_k1, gen_k3
        gens["k1"] = gen_k1
        gens["k3"] = gen_k3
    except ImportError:
        pass
    head = []
    body = []
    names = []
    for k in which:
        a = Asm()
        nm = gens[k](a)
        names.append(nm)
        head.append(f"; @launch kernel={nm} grid=(256,1,1) block=(256,1,1) lds=163840")
        body.append(a.text())
    out = "\n".join(head) + "\n"
    out += '.amdgcn_target "amdgcn-amd-amdhsa--gfx950"\n.text\n'
    out += "".join(body)
    out += '.section .rodata,"a"\n'
    for nm in names:
        out += ".p2align 6\n" + kernel_desc(nm)
    open(path, "w").write(out)


if __name__ == "__main__":
    which = sys.argv[1].split(",")
    if len(sys.argv) > 3:
        STAMP = True
    build(which, sys.argv[2])
```

```python
from asmlib import *
import gen as G
from gen import *
import struct


def fbits(x):
    return "0x%08x" % struct.unpack("<I", struct.pack("<f", x))[0]


LOG2E = 1.4426950408889634


def gen_k3(a):
    name = "k3_kernel"
    prologue(a, name)
    S_RB, S_J, S_T, S_ODD, S_MT, S_RH = 6, 7, 8, 9, 10, 11
    SM_, SWS = 40, 44
    a(f"s_lshr_b32 s{S_RB}, s{S_I}, 4")
    a(f"s_lshl_b32 s56, s{S_XCD}, 1")
    a(f"s_add_u32 s{S_RB}, s{S_RB}, s56")
    a(f"s_and_b32 s{S_J}, s{S_I}, 15")
    a(f"s_and_b32 s{S_ODD}, s{S_J}, 1")
    a(f"s_lshl_b32 s{S_T}, s{S_RB}, 2")
    a(f"s_add_u32 s{S_T}, s{S_T}, s{S_WAVE}")
    a(f"s_and_b32 s{S_MT}, s{S_WAVE}, 1")
    a(f"s_lshr_b32 s{S_RH}, s{S_WAVE}, 1")
    V_L16, V_DF, V_DH, V_T0, V_T1, V_AH = 2, 3, 4, 8, 9, 5
    V_A = [10, 11, 12, 13, 14, 15]
    ACC, WB = 64, 176
    AF = 256
    NS, CH = 11, 12288
    HBASE, NHS = NS * CH, 6
    LDS_CS = HBASE + NHS * 4096
    assert LDS_CS + 1024 <= 163840
    a(f"v_lshlrev_b32 v{V_L16}, 4, v{V_LANE}")
    a(f"v_lshrrev_b32 v{V_T0}, 2, v{V_LANE}")
    a(f"v_mul_u32_u24 v{V_DF}, 3584, v{V_T0}")
    a(f"v_and_b32 v{V_T0}, 3, v{V_LANE}")
    a(f"s_lshl_b32 s56, s{S_MT}, 1")
    a(f"v_xor_b32 v{V_T0}, s56, v{V_T0}")
    a(f"v_lshl_add_u32 v{V_DF}, v{V_T0}, 4, v{V_DF}")
    a(f"v_lshrrev_b32 v{V_T0}, 1, v{V_LANE}")
    a(f"s_lshl_b32 s56, s{S_MT}, 2")
    a(f"v_xor_b32 v{V_T0}, s56, v{V_T0}")
    a(f"v_mul_u32_u24 v{V_DH}, 3584, v{V_T0}")
    a(f"v_and_b32 v{V_T0}, 1, v{V_LANE}")
    a(f"v_lshl_add_u32 v{V_DH}, v{V_T0}, 4, v{V_DH}")
    a(f"v_bfe_u32 v{V_T0}, v{V_LANE}, 4, 1")
    a(f"v_mul_u32_u24 v{V_A[0]}, 2080, v{V_T0}")
    a(f"v_bfe_u32 v{V_T1}, v{V_LANE}, 2, 2")
    a(f"v_lshl_add_u32 v{V_A[0]}, v{V_T1}, 6, v{V_A[0]}")
    a(f"v_lshrrev_b32 v{V_T1}, 5, v{V_LANE}")
    a(f"v_lshl_add_u32 v{V_A[0]}, v{V_T1}, 8, v{V_A[0]}")
    a(f"v_and_b32 v{V_T1}, 3, v{V_LANE}")
    a(f"v_lshl_add_u32 v{V_A[0]}, v{V_T1}, 3, v{V_A[0]}")
    a(f"v_xor_b32 v{V_A[1]}, 32, v{V_A[0]}")
    for wdw in (1, 2):
        a(f"v_add_u32 v{V_A[2*wdw]}, {65536*wdw}, v{V_A[0]}")
        a(f"v_add_u32 v{V_A[2*wdw+1]}, {65536*wdw}, v{V_A[1]}")
    a(f"v_lshlrev_b32 v{V_AH}, 11, v{V_T0}")
    a(f"v_lshrrev_b32 v{V_T1}, 5, v{V_LANE}")
    a(f"v_xor_b32 v{V_T1}, v{V_T1}, v{V_T0}")
    a(f"v_lshl_add_u32 v{V_AH}, v{V_T1}, 7, v{V_AH}")
    a(f"v_bfe_u32 v{V_T1}, v{V_LANE}, 2, 2")
    a(f"v_lshl_add_u32 v{V_AH}, v{V_T1}, 5, v{V_AH}")
    a(f"v_and_b32 v{V_T1}, 3, v{V_LANE}")
    a(f"v_lshl_add_u32 v{V_AH}, v{V_T1}, 3, v{V_AH}")
    a(f"v_add_u32 v{V_AH}, {HBASE}, v{V_AH}")
    a("s_waitcnt lgkmcnt(0)")
    a(f"s_cmp_eq_u32 s{S_MT}, 0")
    a(f"s_cselect_b32 s{SM_}, s{P_WG}, s{P_WU}")
    a(f"s_cselect_b32 s{SM_+1}, s{P_WG+1}, s{P_WU+1}")
    a(f"s_mov_b32 s{SM_+2}, {512*3584}")
    a(f"s_mov_b32 s{SM_+3}, 0x00020000")
    srd(a, SWS, P_WS, WS_USED)
    S_AO, S_BF, S_BH, S_MF = 60, 61, 62, 63
    a(f"s_lshl_b32 s{S_AO}, s{S_T}, 15")
    a(f"s_add_u32 s{S_AO}, s{S_AO}, {OFF_H}")
    a(f"s_mul_i32 s56, s{S_J}, 224")
    a(f"s_mul_i32 s57, s{S_RH}, {16*3584}")
    a(f"s_add_u32 s{S_BF}, s56, s57")
    a(f"s_lshl_b32 s58, s{S_ODD}, 5")
    a(f"s_add_u32 s{S_BF}, s{S_BF}, s58")
    a(f"s_lshl_b32 s57, s57, 1")
    a(f"s_add_u32 s{S_BH}, s56, s57")
    a(f"s_xor_b32 s58, s{S_ODD}, 1")
    a(f"s_mul_i32 s58, s58, 192")
    a(f"s_add_u32 s{S_BH}, s{S_BH}, s58")
    a(f"s_lshl_b32 s{S_MF}, s{S_MT}, 11")
    a(f"s_lshl_b32 s57, s{S_RH}, 10")
    a(f"s_add_u32 s{S_MF}, s{S_MF}, s57")

    def chunk_ops(c):
        ops = []
        slot = c % NS
        for u in range(3):
            def f(u=u):
                a(f"s_add_u32 m0, s{S_MF}, {slot*CH + u*4096}")
                a(f"s_add_u32 s56, s{S_BF}, {32*c*3584 + 64*u}")
                a.vmem(f"buffer_load_dwordx4 v{V_DF}, s[{SM_}:{SM_+3}], s56 offen lds", ("c", c))
            ops.append(f)
        if c % 2 == 0:
            def f():
                a(f"s_add_u32 m0, s{S_MF}, {HBASE + ((c//2) % NHS)*4096}")
                a(f"s_add_u32 s56, s{S_BH}, {32*c*3584}")
                a.vmem(f"buffer_load_dwordx4 v{V_DH}, s[{SM_}:{SM_+3}], s56 offen lds", ("c", c))
            ops.append(f)
        for i in range(2):
            def f(i=i):
                a(f"s_add_u32 s57, s{S_AO}, {(2*c+i)*1024}")
                a.vmem(f"buffer_load_dwordx4 {vr(AF+(2*c+i)*4,4)}, v{V_L16}, s[{SWS}:{SWS+3}], s57 offen", ("c", c))
            ops.append(f)
        return ops

    PRE = 3
    stamp(a, 0)
    for c in range(PRE):
        for f in chunk_ops(c):
            f()
    ST = 16
    CSV = 32
    a(f"v_and_b32 v{V_T0}, 31, v{V_LANE}")
    a(f"v_lshlrev_b32 v{V_T0}, 3, v{V_T0}")
    a(f"v_lshrrev_b32 v{V_T1}, 5, v{V_LANE}")
    a(f"v_lshl_add_u32 v{V_T0}, v{V_T1}, 17, v{V_T0}")
    a(f"s_lshl_b32 s56, s{S_T}, 8")
    a(f"s_add_u32 s56, s56, {OFF_ST}")
    for q in range(8):
        a.vmem(f"buffer_load_dwordx2 {vr(ST+2*q,2)}, v{V_T0}, s[{SWS}:{SWS+3}], s56 offen", "st")
        a("s_add_u32 s56, s56, 16384")
    a(f"v_lshlrev_b32 v{V_T1}, 2, v0")
    a(f"s_mul_i32 s56, s{S_J}, 896")
    a(f"s_add_u32 s56, s56, {OFF_CS}")
    for q in range(16):
        a.vmem(f"buffer_load_dword v{CSV+q}, v{V_T1}, s[{SWS}:{SWS+3}], s56 offen", "cs")
        a(f"s_add_u32 s56, s56, {16*896}")

    pending = []
    nxt = [PRE]
    items = []
    for c in range(16):
        slot = c % NS
        for s2 in range(2):
            for lt in range(7):
                if lt < 6:
                    off = slot * CH + (lt // 2) * 4096 + 16 * s2 * 64
                    wdw = off // 65536
                    if (off + 512) // 65536 != wdw:
                        raise RuntimeError("window")
                    it = dict(addr=V_A[2 * wdw + (lt & 1)], o0=off - wdw * 65536, o1=off - wdw * 65536 + 512)
                else:
                    off = ((c // 2) % NHS) * 4096 + (32 * (c & 1) + 16 * s2) * 32
                    it = dict(addr=V_AH, o0=off, o1=off + 256)
                it["mf"] = [(ACC + 16 * lt, 16, AF + 4 * (2 * c + s2), False)]
                it["czero"] = (c == 0 and s2 == 0)
                if s2 == 0 and lt == 0:
                    def pre(c=c):
                        while pending:
                            pending.pop(0)()
                        a.wait_vm(("c", c))
                        a("s_barrier")
                        if c < 8:
                            stamp(a, 1 + c)
                        while nxt[0] < 16 and nxt[0] - NS <= c - 2 and nxt[0] <= c + PRE + 1 and \
                                (nxt[0] % 2 == 1 or 2 * (nxt[0] // 2 - NHS) + 1 <= c - 2):
                            pending.extend(chunk_ops(nxt[0]))
                            nxt[0] += 1
                    it["pre"] = pre

                def post():
                    if pending:
                        pending.pop(0)()
                it["post"] = post
                items.append(it)
    mfma_pipe(a, items, [WB, WB + 4, WB + 8, WB + 12], 3)
    assert nxt[0] == 16 and not pending
    stamp(a, 9)
    a.wait_vm_all()
    for q in range(1, 16):
        a(f"v_add_f32 v{CSV}, v{CSV}, v{CSV+q}")
    a(f"v_lshlrev_b32 v{V_T1}, 2, v0")
    a(f"v_add_u32 v{V_T1}, {LDS_CS}, v{V_T1}")
    a.ds(f"ds_write_b32 v{V_T1}, v{CSV}")
    MEAN, RSTD, NM = 48, 49, 50
    a(f"v_add_f32 v{MEAN}, v{ST}, v{ST+2}")
    for q in range(2, 8):
        a(f"v_add_f32 v{MEAN}, v{MEAN}, v{ST+2*q}")
    xlane32_sum(a, MEAN, V_T0)
    a(f"v_mul_f32 v{MEAN}, {1.0/16}, v{MEAN}")
    a(f"v_mov_b32 v{RSTD}, 0")
    for q in range(8):
        a(f"v_sub_f32 v{V_T0}, v{ST+2*q}, v{MEAN}")
        a(f"v_fmac_f32 v{RSTD}, v{V_T0}, v{V_T0}")
    a(f"v_mul_f32 v{RSTD}, {fbits(32.0)}, v{RSTD}")
    for q in range(8):
        a(f"v_add_f32 v{RSTD}, v{RSTD}, v{ST+2*q+1}")
    xlane32_sum(a, RSTD, V_T0)
    a(f"v_mov_b32 v{V_T0}, {fbits(1e-5)}")
    a(f"v_fmac_f32 v{V_T0}, {fbits(1.0/512)}, v{RSTD}")
    a(f"v_rsq_f32 v{RSTD}, v{V_T0}")
    a(f"v_mul_f32 v{NM}, v{MEAN}, v{RSTD}")
    a(f"v_sub_f32 v{NM}, 0, v{NM}")
    a.wait_lg_all()
    a("s_barrier")
    C1 = -2.0 * 0.7978845608028654 * LOG2E
    C2 = C1 * 0.044715
    a(f"s_mov_b32 s64, {fbits(C1)}")
    a(f"s_mov_b32 s65, {fbits(C2)}")
    a(f"v_mov_b32 v51, s64")
    V_CA = 52
    a(f"v_lshrrev_b32 v{V_T0}, 5, v{V_LANE}")
    a(f"v_lshlrev_b32 v{V_CA}, 4, v{V_T0}")
    a(f"v_add_u32 v{V_CA}, {LDS_CS}, v{V_CA}")
    CS = 16
    TMP = 32
    for lt in range(7):
        if lt < 6:
            a(f"s_add_u32 s58, s{S_ODD}, {lt}")
        else:
            a(f"s_xor_b32 s58, s{S_ODD}, 1")
            a("s_mul_i32 s58, s58, 6")
        a("s_lshl_b32 s56, s58, 7")
        a(f"v_add_u32 v{V_T0}, s56, v{V_CA}")
        for q in range(4):
            a.ds(f"ds_read_b128 {vr(CS+4*q,4)}, v{V_T0} offset:{q*32}")
        a.wait_lg_all()
        A0 = ACC + 16 * lt
        for r in range(8):
            g_, u_ = A0 + r, A0 + 8 + r
            t0, t1 = TMP + 2 * r, TMP + 2 * r + 1
            a(f"v_mul_f32 v{t0}, v{NM}, v{CS+r}")
            a(f"v_mul_f32 v{t1}, v{NM}, v{CS+8+r}")
            a(f"v_fma_f32 v{g_}, v{g_}, v{RSTD}, v{t0}")
            a(f"v_fma_f32 v{u_}, v{u_}, v{RSTD}, v{t1}")
            a(f"v_mul_f32 v{t0}, v{g_}, v{g_}")
            a(f"v_fma_f32 v{t0}, v{t0}, s65, v51")
            a(f"v_mul_f32 v{t0}, v{t0}, v{g_}")
            a(f"v_exp_f32 v{t0}, v{t0}")
            a(f"v_mul_f32 v{u_}, v{u_}, v{g_}")
            a(f"v_add_f32 v{t0}, 1.0, v{t0}")
            a(f"v_rcp_f32 v{t0}, v{t0}")
            a(f"v_mul_f32 v{g_}, v{u_}, v{t0}")
        for q in range(4):
            a(f"v_cvt_pk_bf16_f32 v{A0+8+q}, v{A0+2*q}, v{A0+2*q+1}")
        a(f"s_mul_i32 s56, s{S_T}, 112")
        a(f"s_mul_i32 s57, s{S_J}, 7")
        a("s_add_u32 s56, s56, s57")
        a("s_add_u32 s56, s56, s58")
        a("s_lshl_b32 s56, s56, 10")
        a(f"s_add_u32 s56, s56, {OFF_ACT}")
        a.vmem(f"buffer_store_dwordx4 {vr(A0+8,4)}, v{V_L16}, s[{SWS}:{SWS+3}], s56 offen")
    stamp_flush(a, 10, SWS, 2)
    epilogue(a, name)
    return name


def gen_k1(a):
    name = "k1_kernel"
    prologue(a, name)
    S_RB, S_HQ = 6, 7
    SX, SW, SWS = 36, 40, 44
    a(f"s_lshr_b32 s{S_RB}, s{S_I}, 3")
    a(f"s_lshl_b32 s56, s{S_XCD}, 2")
    a(f"s_add_u32 s{S_RB}, s{S_RB}, s56")
    a(f"s_and_b32 s{S_HQ}, s{S_I}, 7")
    V_L16, V_T0, V_T1, V_T2 = 2, 3, 4, 5
    V_DW = [6, 7]
    V_AW = [8, 9, 10]
    V_XA = [11, 12, 13, 14]
    XB = 81920
    SLOT = 8192
    LDS_ST = 19 * SLOT
    ACCK, ACCQ, ACCV = 64, 84, 104
    WB = 124
    XF4 = 192

    def xf(i, ks):
        return (256 + (16 * i + ks) * 4) if i < 4 else (XF4 + ks * 4)

    a(f"v_lshlrev_b32 v{V_L16}, 4, v{V_LANE}")
    a(f"v_lshrrev_b32 v{V_T0}, 3, v{V_LANE}")
    a(f"v_mul_u32_u24 v{V_T1}, 3072, v{V_T0}")
    a(f"v_bfe_u32 v{V_T0}, v{V_LANE}, 4, 1")
    a(f"v_lshlrev_b32 v{V_T0}, 1, v{V_T0}")
    a(f"v_and_b32 v{V_T2}, 7, v{V_LANE}")
    a(f"v_xor_b32 v{V_T0}, v{V_T0}, v{V_T2}")
    a(f"v_lshl_add_u32 v{V_DW[0]}, v{V_T0}, 4, v{V_T1}")
    a(f"v_xor_b32 v{V_DW[1]}, 64, v{V_DW[0]}")
    a(f"v_lshrrev_b32 v{V_T0}, 4, v{V_LANE}")
    a(f"v_lshlrev_b32 v{V_AW[0]}, 10, v{V_T0}")
    a(f"v_bfe_u32 v{V_T1}, v{V_LANE}, 2, 2")
    a(f"v_lshl_add_u32 v{V_AW[0]}, v{V_T1}, 7, v{V_AW[0]}")
    a(f"v_lshrrev_b32 v{V_T1}, 1, v{V_T1}")
    a(f"v_and_b32 v{V_T0}, 1, v{V_T0}")
    a(f"v_lshl_add_u32 v{V_T1}, v{V_T0}, 1, v{V_T1}")
    a(f"v_xor_b32 v{V_T1}, s{S_WAVE}, v{V_T1}")
    a(f"v_lshl_add_u32 v{V_AW[0]}, v{V_T1}, 5, v{V_AW[0]}")
    a(f"v_and_b32 v{V_T1}, 3, v{V_LANE}")
    a(f"v_lshl_add_u32 v{V_AW[0]}, v{V_T1}, 3, v{V_AW[0]}")
    a(f"v_add_u32 v{V_AW[1]}, 65536, v{V_AW[0]}")
    a(f"v_add_u32 v{V_AW[2]}, 131072, v{V_AW[0]}")
    a(f"v_and_b32 v{V_T0}, 15, v{V_LANE}")
    a(f"v_lshrrev_b32 v{V_T1}, 4, v{V_LANE}")
    a(f"v_xor_b32 v{V_T1}, v{V_T1}, v{V_T0}")
    a(f"v_lshlrev_b32 v{V_T0}, 10, v{V_T0}")
    a(f"v_lshl_add_u32 v{V_T0}, v{V_T1}, 4, v{V_T0}")
    a(f"v_add_u32 v{V_XA[0]}, {XB}, v{V_T0}")
    for q in range(1, 4):
        a(f"v_xor_b32 v{V_XA[q]}, {64*q}, v{V_XA[0]}")
    a("s_waitcnt lgkmcnt(0)")
    srd(a, SX, P_X, 2 * MB)
    srd(a, SW, P_QKV, 512 * 3072)
    srd(a, SWS, P_WS, WS_USED)
    stamp(a, 0)
    S_R0, S_XO, S_XM = 60, 61, 62
    a(f"s_mul_i32 s{S_R0}, s{S_WAVE}, 20")
    a(f"s_lshl_b32 s56, s{S_RB}, 6")
    a("s_sub_u32 s56, s56, 16")
    a(f"s_add_u32 s56, s56, s{S_R0}")
    a(f"s_lshl_b32 s{S_XO}, s56, 10")
    a(f"s_lshl_b32 s{S_XM}, s{S_R0}, 10")
    a(f"s_add_u32 s{S_XM}, s{S_XM}, {XB}")
    lab = a.label("ones")
    lab2 = a.label("ones_done")
    for e in range(20):
        a(f"s_add_u32 s56, s{S_R0}, {e}")
        a("s_and_b32 s56, s56, 15")
        a("s_lshl_b32 s56, s56, 4")
        a(f"v_xor_b32 v{V_T0}, s56, v{V_L16}")
        a(f"s_add_u32 m0, s{S_XM}, {e*1024}")
        a(f"s_add_u32 s57, s{S_XO}, {e*1024}")
        if e == 0:
            a(f"s_cmp_eq_u32 s{S_WAVE}, 0")
            a(f"s_cbranch_scc1 {lab}")
        a.vmem(f"buffer_load_dwordx4 v{V_T0}, s[{SX}:{SX+3}], s57 offen lds", ("x", e // 4))
        if e == 0:
            a(f"s_branch {lab2}")
            a(f"{lab}:")
            for q in range(4):
                a(f"v_mov_b32 v{16+q}, 0x3f803f80")
            a(f"v_add_u32 v{V_T1}, {XB}, v{V_L16}")
            a(f"ds_write_b128 v{V_T1}, v[16:19]")
            a(f"{lab2}:")
    S_WO = 63
    a(f"s_lshl_b32 s56, s{S_WAVE}, 4")
    a(f"s_mul_i32 s{S_WO}, s56, 3072")
    a(f"s_lshl_b32 s56, s{S_HQ}, 7")
    a(f"s_add_u32 s{S_WO}, s{S_WO}, s56")
    S_WM = 64
    a(f"s_lshl_b32 s{S_WM}, s{S_WAVE}, 11")
    ORDER = [1, 0, 2]

    def wslot(n):
        if n < 19:
            return n if n < 10 else n
        return n - 19

    def w_ops(n):
        mt, c = ORDER[n // 8], n % 8
        ops = []
        for e in range(2):
            def f(e=e):
                a(f"s_add_u32 m0, s{S_WM}, {wslot(n)*SLOT + e*1024}")
                a(f"s_add_u32 s56, s{S_WO}, {(64*c + 8*e)*3072 + mt*1024}")
                a.vmem(f"buffer_load_dwordx4 v{V_DW[e]}, s[{SW}:{SW+3}], s56 offen lds", ("w", n))
            ops.append(f)
        return ops

    for n in range(10):
        for f in w_ops(n):
            f()
    SD = 16
    V_SA = 15
    a(f"v_lshrrev_b32 v{V_T0}, 4, v{V_LANE}")
    a(f"v_lshlrev_b32 v{V_SA}, 10, v{V_T0}")
    a(f"v_and_b32 v{V_T0}, 15, v{V_LANE}")
    a(f"v_lshl_add_u32 v{V_SA}, v{V_T0}, 4, v{V_SA}")
    a(f"v_add_u32 v{V_SA}, s{S_XM}, v{V_SA}")
    a("s_mov_b32 s65, 0x3f803f80")
    STR = 40
    a("s_waitcnt lgkmcnt(0)")
    for p in range(5):
        a.wait_vm(("x", p))
        for e in range(4):
            a.ds(f"ds_read_b128 {vr(SD+4*e,4)}, v{V_SA} offset:{p*4096 + e*256}")
        sm, sq = STR + 2 * p, STR + 2 * p + 1
        a(f"v_mov_b32 v{sm}, 0")
        a(f"v_mov_b32 v{sq}, 0")
        a.wait_lg_all()
        for r in range(16):
            a(f"v_dot2_f32_bf16 v{sm}, v{SD+r}, s65, v{sm}")
            a(f"v_dot2_f32_bf16 v{sq}, v{SD+r}, v{SD+r}, v{sq}")
        for rot in (8, 4, 2, 1):
            a(f"v_add_f32_dpp v{sm}, v{sm}, v{sm} row_ror:{rot} row_mask:0xf bank_mask:0xf")
            a(f"v_add_f32_dpp v{sq}, v{sq}, v{sq} row_ror:{rot} row_mask:0xf bank_mask:0xf")
        a(f"v_mul_f32 v{sm}, {fbits(1.0/512)}, v{sm}")
        a(f"v_mul_f32 v{V_T0}, v{sm}, v{sm}")
        a(f"v_fma_f32 v{V_T0}, v{sq}, {vconst(a, 1.0/512)}, -v{V_T0}")
        a(f"v_max_f32 v{V_T0}, 0, v{V_T0}")
        a(f"v_add_f32 v{V_T0}, {fbits(1e-5)}, v{V_T0}")
        a(f"v_rsq_f32 v{sq}, v{V_T0}")
    stamp(a, 1)
    a("s_barrier")
    for i in range(5):
        if i == 4:
            for q in range(4):
                a(f"v_add_u32 v{V_XA[q]}, 65536, v{V_XA[q]}")
        for ks in range(16):
            off = (i % 4) * 16384 + (ks >> 2) * 256
            a.ds(f"ds_read_b128 {vr(xf(i,ks),4)}, v{V_XA[ks&3]} offset:{off}")
    a.wait_lg_all()
    a("s_barrier")
    stamp(a, 2)
    a(f"v_lshrrev_b32 v{V_T0}, 4, v{V_LANE}")
    a(f"v_add_u32 v{V_T0}, s{S_R0}, v{V_T0}")
    a(f"v_lshlrev_b32 v{V_T0}, 3, v{V_T0}")
    a(f"v_add_u32 v{V_T0}, {LDS_ST}, v{V_T0}")
    for p in range(5):
        a.ds(f"ds_write_b64 v{V_T0}, {vr(STR+2*p,2)} offset:{p*32}")
    pending = []
    for n in range(10, 19):
        pending.extend((n, f) for f in w_ops(n))
    nxt = [19]
    items = []
    for n in range(24):
        mt = ORDER[n // 8]
        acc = [ACCQ, ACCK, ACCV][mt]
        for s2 in range(2):
            ks = 2 * (n % 8) + s2
            off = wslot(n) * SLOT + 32 * s2 * 128
            wdw = off // 65536
            it = dict(addr=V_AW[wdw], o0=off - wdw * 65536, o1=off - wdw * 65536 + 512,
                      mf=[(acc + 4 * i, 4, xf(i, ks), mt == 2) for i in range(5)], czero=(ks == 0))
            if s2 == 0:
                def pre(n=n):
                    while pending and pending[0][0] <= n:
                        pending.pop(0)[1]()
                    a.wait_vm(("w", n))
                    a("s_barrier")
                    while nxt[0] < 24 and (nxt[0] - 19) <= n - 2:
                        pending.extend((nxt[0], f) for f in w_ops(nxt[0]))
                        nxt[0] += 1
                it["pre"] = pre

            def post():
                for _ in range(2):
                    if pending:
                        pending.pop(0)[1]()
            it["post"] = post
            items.append(it)
    mfma_pipe(a, items, [WB, WB + 4, WB + 8, WB + 12], 2, mf="v_mfma_f32_16x16x32_bf16")
    assert not pending and nxt[0] == 24
    stamp(a, 3)
    CSK, CSQ, CSV_ = 16, 20, 24
    for r in range(4):
        a(f"v_mov_b32_dpp v{CSK+r}, v{ACCK+r} row_newbcast:0 row_mask:0xf bank_mask:0xf")
        a(f"v_mov_b32_dpp v{CSQ+r}, v{ACCQ+r} row_newbcast:0 row_mask:0xf bank_mask:0xf")
    a(f"v_and_b32 v{V_T0}, 15, v{V_LANE}")
    a(f"v_lshlrev_b32 v{V_T1}, 2, v{V_T0}")
    a.ds(f"ds_bpermute_b32 v{CSV_}, v{V_T1}, v{ACCV}")
    TS = 26
    NSR = 140
    a(f"v_lshlrev_b32 v{V_T1}, 3, v{V_T0}")
    a(f"v_add_u32 v{V_T1}, {LDS_ST}, v{V_T1}")
    for i in range(5):
        a.ds(f"ds_read_b64 {vr(TS+2*i,2)}, v{V_T1} offset:{i*128}")
    a(f"v_lshrrev_b32 v{V_T2}, 4, v{V_LANE}")
    a(f"v_lshlrev_b32 v{V_T2}, 5, v{V_T2}")
    a(f"v_add_u32 v{V_T2}, {LDS_ST}, v{V_T2}")
    for i in range(5):
        a.ds(f"ds_read_b128 {vr(NSR+8*i,4)}, v{V_T2} offset:{i*128}")
        a.ds(f"ds_read_b128 {vr(NSR+8*i+4,4)}, v{V_T2} offset:{i*128+16}")
    BO, BP, BF = 36, 40, 44
    NEG = fbits(-1e30)
    a(f"v_lshrrev_b32 v{V_T1}, 4, v{V_LANE}")
    a(f"v_lshlrev_b32 v{V_T1}, 2, v{V_T1}")
    a(f"v_sub_u32 v{V_T1}, v{V_T0}, v{V_T1}")
    a(f"v_mov_b32 v48, {NEG}")
    for r in range(4):
        a(f"v_subrev_u32 v{V_T2}, {r}, v{V_T1}")
        a(f"v_and_b32 v49, 0x80000001, v{V_T2}")
        a(f"v_cmp_eq_u32 vcc, 0, v49")
        a(f"v_cndmask_b32 v{BO+r}, v48, 0, vcc")
        a(f"v_cmp_eq_u32 vcc, 0x80000000, v49")
        a(f"v_cndmask_b32 v{BP+r}, v48, 0, vcc")
    a(f"s_cmp_eq_u32 s{S_RB}, 0")
    a("s_cselect_b64 vcc, -1, 0")
    for r in range(4):
        a(f"v_cndmask_b32 v{BF+r}, v{BP+r}, v48, vcc")
    a.wait_lg_all()
    KP, QP, VP = 180, 50, 180 + 10
    for i in range(5):
        mean, rstd = TS + 2 * i, TS + 2 * i + 1
        for (acc, cs, dst) in ((ACCK, CSK, KP), (ACCQ, CSQ, QP)):
            if acc == ACCQ and i == 0:
                continue
            for r in range(4):
                a(f"v_fma_f32 v{acc+4*i+r}, -v{mean}, v{cs+r}, v{acc+4*i+r}")
                a(f"v_mul_f32 v{acc+4*i+r}, v{acc+4*i+r}, v{rstd}")
            a(f"v_cvt_pk_bf16_f32 v{dst+2*i}, v{acc+4*i}, v{acc+4*i+1}")
            a(f"v_cvt_pk_bf16_f32 v{dst+2*i+1}, v{acc+4*i+2}, v{acc+4*i+3}")
        for r in range(4):
            a(f"v_fma_f32 v{ACCV+4*i+r}, -v{NSR+8*i+2*r}, v{CSV_}, v{ACCV+4*i+r}")
            a(f"v_mul_f32 v{ACCV+4*i+r}, v{ACCV+4*i+r}, v{NSR+8*i+2*r+1}")
        a(f"v_cvt_pk_bf16_f32 v{VP+2*i}, v{ACCV+4*i}, v{ACCV+4*i+1}")
        a(f"v_cvt_pk_bf16_f32 v{VP+2*i+1}, v{ACCV+4*i+2}, v{ACCV+4*i+3}")
    SR = 64
    for i in range(1, 5):
        a(f"v_mfma_f32_16x16x16_bf16 {vr(SR+8*(i-1),4)}, {vr(KP+2*(i-1),2)}, {vr(QP+2*i,2)}, 0")
        a(f"v_mfma_f32_16x16x16_bf16 {vr(SR+8*(i-1)+4,4)}, {vr(KP+2*i,2)}, {vr(QP+2*i,2)}, 0")
    a(f"s_mov_b32 s66, {fbits(0.25*LOG2E)}")
    PP = 100
    OA = 120
    for i in range(1, 5):
        S = SR + 8 * (i - 1)
        bp = BF if i == 1 else BP
        for r in range(4):
            a(f"v_fma_f32 v{S+r}, v{S+r}, s66, v{bp+r}")
            a(f"v_fma_f32 v{S+4+r}, v{S+4+r}, s66, v{BO+r}")
        mx, t = V_T0, V_T1
        a(f"v_max3_f32 v{mx}, v{S}, v{S+1}, v{S+2}")
        a(f"v_max3_f32 v{mx}, v{mx}, v{S+3}, v{S+4}")
        a(f"v_max3_f32 v{mx}, v{mx}, v{S+5}, v{S+6}")
        a(f"v_max_f32 v{mx}, v{mx}, v{S+7}")
        for pl in ("v_permlane16_swap_b32", "v_permlane32_swap_b32"):
            a(f"v_mov_b32 v{t}, v{mx}")
            a(f"{pl} v{mx}, v{t}")
            a(f"v_max_f32 v{mx}, v{mx}, v{t}")
        for r in range(8):
            a(f"v_sub_f32 v{S+r}, v{S+r}, v{mx}")
            a(f"v_exp_f32 v{S+r}, v{S+r}")
        sm = V_T2
        a(f"v_add_f32 v{sm}, v{S}, v{S+1}")
        for r in range(2, 8):
            a(f"v_add_f32 v{sm}, v{sm}, v{S+r}")
        for pl in ("v_permlane16_swap_b32", "v_permlane32_swap_b32"):
            a(f"v_mov_b32 v{t}, v{sm}")
            a(f"{pl} v{sm}, v{t}")
            a(f"v_add_f32 v{sm}, v{sm}, v{t}")
        a(f"v_rcp_f32 v{sm}, v{sm}")
        for r in range(8):
            a(f"v_mul_f32 v{S+r}, v{S+r}, v{sm}")
        for q in range(4):
            a(f"v_cvt_pk_bf16_f32 v{PP+4*(i-1)+q}, v{S+2*q}, v{S+2*q+1}")
        a(f"v_mfma_f32_16x16x32_bf16 {vr(OA+4*(i-1),4)}, {vr(VP+2*(i-1),4)}, {vr(PP+4*(i-1),4)}, 0")
    OP = 16
    for i in range(4):
        a(f"v_cvt_pk_bf16_f32 v{OP+2*i}, v{OA+4*i}, v{OA+4*i+1}")
        a(f"v_cvt_pk_bf16_f32 v{OP+2*i+1}, v{OA+4*i+2}, v{OA+4*i+3}")
    for p in range(2):
        a(f"v_permlane16_swap_b32 v{OP+4*p}, v{OP+4*p+2}")
        a(f"v_permlane16_swap_b32 v{OP+4*p+1}, v{OP+4*p+3}")
    a(f"s_lshl_b32 s56, s{S_RB}, 6")
    a(f"s_lshl_b32 s57, s{S_HQ}, 2")
    a("s_add_u32 s56, s56, s57")
    a(f"s_add_u32 s56, s56, s{S_WAVE}")
    a("s_lshl_b32 s56, s56, 10")
    if OFF_O:
        a(f"s_add_u32 s56, s56, {OFF_O}")
    a("s_add_u32 s57, s56, 32768")
    a.vmem(f"buffer_store_dwordx4 {vr(OP,4)}, v{V_L16}, s[{SWS}:{SWS+3}], s56 offen")
    a.vmem(f"buffer_store_dwordx4 {vr(OP+4,4)}, v{V_L16}, s[{SWS}:{SWS+3}], s57 offen")
    stamp_flush(a, 4, SWS, 0)
    epilogue(a, name)
    return name


def vconst(a, x):
    a(f"s_mov_b32 s67, {fbits(x)}")
    return "s67"
```
